```python
import torch

def _softmax(x, axis=-1):
    return torch.softmax(x, dim=axis)
def _gelu(x):
    return torch.nn.functional.gelu(x, approximate="tanh")
def _silu(x):
    return torch.nn.functional.silu(x)
def _sigmoid(x):
    return torch.sigmoid(x)
def _layernorm(x, axis=-1, eps=1e-5):
    m = x.mean(dim=axis, keepdim=True)
    v = x.var(dim=axis, keepdim=True, unbiased=False)
    return (x - m) / torch.sqrt(v + eps)
def _scatter_add(tgt, idx, src, axis=0):
    return tgt.clone().index_add_(axis, idx, src)
def _segment_sum(src, seg, n):
    out = torch.zeros((n,) + src.shape[1:], dtype=src.dtype)
    return out.index_add_(0, seg, src)
def _pad(x, pw):
    flat = tuple(v for pair in reversed(pw) for v in pair)
    return torch.nn.functional.pad(x, flat)

kernel_name = 'standalone__sequential_behavior_din__recsys'

def setup_inputs():

    _w = (lambda a: (lambda t: t.to(torch.bfloat16) if t.is_floating_point() else t)(torch.as_tensor(a)))
    B, L, D = 4096, 200, 128
    H = D
    return {
        "target": _w((lambda *s: torch.randn(*s, dtype=torch.bfloat16) * 1.6)(B, D)),
        "hist": _w((lambda *s: torch.randn(*s, dtype=torch.bfloat16) * 1.6)(B, L, D)),
        "mask": _w((lambda lo, hi, *s: torch.randint(lo, hi, s))(0, 2, B, L).to(float)),
        "w1": _w((lambda *s: torch.randn(*s, dtype=torch.bfloat16) * 1.6)(4 * D, H) * (4 * D) ** -0.5),
        "b1": _w((lambda *s: torch.randn(*s, dtype=torch.bfloat16) * 3.2)(H) * 0.1),
        "w2": _w((lambda *s: torch.randn(*s, dtype=torch.bfloat16) * 0.05)(H, 1) * H ** -0.5),
        "b2": _w((lambda *s: torch.randn(*s, dtype=torch.bfloat16) * 0.05)(1) * 0.1),
    }

def reference(target, hist, mask, w1, b1, w2, b2):
    L = hist.shape[1]
    tgt = (lambda x, n, axis: torch.repeat_interleave(x, n, dim=axis))(target[:, None, :], L, axis=1)
    feat = torch.concatenate([hist, tgt, hist - tgt, hist * tgt], axis=-1)
    h = _sigmoid(feat @ w1 + b1)
    scores = (h @ w2 + b2)[..., 0] * mask
    return torch.einsum('bl,bld->bd', scores, hist)
```

```python
import re

REG = re.compile(r'^(v|s|a)\[(\d+):(\d+)\]$|^(v|s|a)(\d+)$')
TRANS = ('v_exp_', 'v_log_', 'v_rcp_', 'v_rsq_', 'v_sqrt_', 'v_sin_', 'v_cos_')


def regs_of(tok):
    tok = tok.strip()
    m = REG.match(tok)
    if m:
        if m.group(1):
            return {(m.group(1), i) for i in range(int(m.group(2)), int(m.group(3)) + 1)}
        return {(m.group(4), int(m.group(5)))}
    if tok == 'vcc':
        return {('s', 'vcc_lo'), ('s', 'vcc_hi')}
    if tok in ('vcc_lo', 'vcc_hi', 'm0'):
        return {('s', tok)}
    if tok == 'exec':
        return {('s', 'exec_lo'), ('s', 'exec_hi')}
    if tok in ('exec_lo', 'exec_hi'):
        return {('s', tok)}
    return set()


def mfma_passes(op):
    if '4x4x4' in op:
        return 2
    if '16x16x32' in op or '16x16x16' in op:
        return 4
    if '32x32' in op:
        return 8
    raise ValueError(op)


class I:
    def __init__(self, text):
        self.text = text
        body = text.split(';')[0].strip()
        parts = body.split(None, 1)
        self.op = parts[0]
        rest = parts[1] if len(parts) > 1 else ''
        toks = [t.strip() for t in rest.split(',')] if rest else []
        mods = ''
        if toks:
            last = toks[-1].split(None, 1)
        ops = []
        flat = rest
        m = re.search(r'\s(offen|idxen|offset\d?:|nt\b|lds\b|op_sel|dst_sel|src0_sel|src1_sel|dst_unused|row_|cbsz|abid|blgp|quad_perm|neg_|clamp|bound_ctrl|bank_mask|sc0|sc1|glc)', ' ' + rest)
        if m:
            cut = max(m.start() - 1, 0)
            mods = rest[cut:]
            flat = rest[:cut]
        self.mods = mods
        ops = [t.strip() for t in flat.split(',') if t.strip()]
        self.ops = ops
        op = self.op
        self.kind = 'other'
        self.dst = set()
        self.src = set()
        self.srcC = set()
        self.states = 1
        self.is_mfma = op.startswith('v_mfma')
        self.is_valu = op.startswith('v_') and not self.is_mfma
        self.is_salu = op.startswith('s_')
        self.is_ds = op.startswith('ds_')
        self.is_vmem = op.startswith('buffer_') or op.startswith('global_')
        self.is_trans = self.is_valu and op.startswith(TRANS)
        self.is_dpp = 'row_' in mods or 'quad_perm' in mods
        self.is_sdwa = op.endswith('_sdwa')
        self.opsel_dst = False
        self.lds_dma = self.is_vmem and re.search(r'\blds\b', mods) is not None
        R = lambda k: regs_of(ops[k]) if k < len(ops) else set()
        allsrc = lambda a: set().union(*[regs_of(o) for o in ops[a:]]) if len(ops) > a else set()
        if op == 's_nop':
            self.states = int(ops[0]) + 1
        elif self.is_mfma:
            self.dst = R(0)
            self.srcA, self.srcB, self.srcC = R(1), R(2), R(3)
            self.src = self.srcA | self.srcB | self.srcC
            self.passes = mfma_passes(op)
        elif self.is_valu:
            if op.startswith('v_cmp'):
                self.dst = R(0)
                self.src = allsrc(1)
            elif op.startswith(('v_add_co', 'v_addc_co', 'v_sub_co')):
                self.dst = R(0) | R(1)
                self.src = allsrc(2)
            else:
                self.dst = R(0)
                self.src = allsrc(1)
                if 'UNUSED_PRESERVE' in mods or op.startswith(('v_fmac', 'v_mac', 'v_writelane')) or self.is_dpp:
                    self.src |= R(0)
                if op.startswith('v_permlane') and 'swap' in op:
                    self.dst = R(0) | R(1)
                    self.src = R(0) | R(1)
            if self.is_sdwa and 'dst_sel:WORD' in mods:
                self.opsel_dst = True
            if 'op_sel:' in mods:
                sel = re.search(r'op_sel:\[([\d,]+)\]', mods).group(1).split(',')
                if not op.startswith('v_pk_') and len(sel) == len(ops) and sel[-1] == '1':
                    self.opsel_dst = True
        elif self.is_ds:
            if op.startswith('ds_read'):
                self.dst = R(0)
                self.src = R(1)
                if 'd16' in op:
                    self.src |= R(0)
            else:
                self.src = allsrc(0)
        elif self.is_vmem:
            if self.lds_dma:
                self.src = allsrc(0) | {('s', 'm0')}
            elif 'load' in op:
                self.dst = R(0)
                self.src = allsrc(1)
            else:
                self.src = allsrc(0)
                self.store_data = R(0)
        elif self.is_salu:
            if op.startswith(('s_cmp', 's_bitcmp', 's_cbranch', 's_branch', 's_waitcnt', 's_barrier', 's_endpgm', 's_setprio', 's_sleep')):
                self.src = allsrc(0)
            else:
                self.dst = R(0)
                self.src = allsrc(1)
                if 'saveexec' in op:
                    self.dst |= regs_of('exec')
        self.vdst = {r for r in self.dst if r[0] in 'va'}
        self.sdst = {r for r in self.dst if r[0] == 's'}
        self.vsrc = {r for r in self.src if r[0] in 'va'}
        self.ssrc = {r for r in self.src if r[0] == 's'}


def need(p, c):
    n = 0
    if p.is_valu:
        if c.is_mfma and (p.vdst & c.src):
            n = max(n, 2)
        if c.is_mfma and (p.sdst & regs_of('exec')):
            n = max(n, 4)
        if p.is_trans and (c.is_valu and not c.is_trans) and (p.vdst & c.vsrc):
            n = max(n, 1)
        if p.opsel_dst and c.is_valu and (p.vdst & (c.vsrc | c.vdst)):
            n = max(n, 1)
        if c.is_valu and c.is_dpp and (p.vdst & c.vsrc):
            n = max(n, 2)
        if c.op.startswith('v_permlane') and (p.vdst & c.vsrc):
            n = max(n, 2)
        if c.op.startswith(('v_readlane', 'v_readfirstlane')) and (p.vdst & c.vsrc):
            n = max(n, 1)
        if p.sdst:
            if c.is_valu and (p.sdst & c.ssrc):
                n = max(n, 4 if c.op.startswith(('v_readlane', 'v_writelane')) else 2)
            if c.is_vmem and (p.sdst & c.ssrc):
                n = max(n, 5)
    if p.is_mfma:
        P = p.passes
        if c.is_mfma:
            if p.dst & c.srcC:
                if p.dst == c.srcC and c.passes == P:
                    n = max(n, 2 if P == 2 else 0)
                else:
                    n = max(n, {2: 4, 4: 6, 8: 10}[P])
            if p.dst & (c.srcA | c.srcB):
                n = max(n, {2: 5, 4: 8, 8: 12}[P])
            if (p.dst & c.dst) and not (p.dst & c.srcC):
                n = max(n, {2: 5, 4: 8, 8: 12}[P])
        elif c.is_valu or c.is_ds or c.is_vmem:
            if p.dst & (c.vsrc | c.vdst):
                n = max(n, {2: 5, 4: 8, 8: 12}[P])
            if c.is_valu and (p.srcC & c.vdst):
                n = max(n, {2: 1, 4: 3, 8: 7}[P])
            if (c.is_ds or c.is_vmem) and (p.srcC & c.vdst):
                n = max(n, {2: 1, 4: 3, 8: 7}[P])
    if p.is_salu and ('s', 'm0') in p.sdst and c.lds_dma:
        n = max(n, 1)
    if p.is_vmem and 'store' in p.op and ('x4' in p.op or 'x3' in p.op):
        if (p.store_data & c.vdst):
            n = max(n, 2)
    return n


class Asm:
    def __init__(self):
        self.items = []

    def __call__(self, text):
        for line in text.strip().split('\n'):
            line = line.strip()
            if not line:
                continue
            if line.startswith(';'):
                self.items.append(('C', line))
            elif line.endswith(':'):
                self.items.append(('L', line[:-1]))
            else:
                self.items.append(('I', I(line)))

    def label(self, n):
        self.items.append(('L', n))

    def fix_hazards(self, verbose=False):
        total = 0
        while True:
            inserted = False
            k = 0
            branches = None
            while k < len(self.items):
                items = self.items
                if branches is None:
                    branches = {}
                    for q, (t, x) in enumerate(items):
                        if t == 'I' and x.op.startswith(('s_cbranch', 's_branch')):
                            branches.setdefault(x.ops[0], []).append(q)
                t, c = items[k]
                if t != 'I':
                    k += 1
                    continue

                def preds(pos):
                    res = []
                    j = pos - 1
                    while j >= 0:
                        tt, x = items[j]
                        if tt == 'I':
                            if x.op not in ('s_branch', 's_endpgm'):
                                res.append(j)
                            break
                        if tt == 'L':
                            res.extend(branches.get(x, []))
                        j -= 1
                    return res

                worst = 0
                why = None
                if c.is_valu or c.is_mfma or c.is_ds or c.is_vmem:
                    stack = [(p, 0) for p in preds(k)]
                    seen = {}
                    while stack:
                        p, d = stack.pop()
                        if d >= 13 or seen.get(p, 99) <= d:
                            continue
                        seen[p] = d
                        pi = items[p][1]
                        n = need(pi, c)
                        if n - d > worst:
                            worst = n - d
                            why = pi
                        for q in preds(p):
                            stack.append((q, d + pi.states))
                if worst > 0:
                    if verbose:
                        print(f'nop {worst}: [{why.text}] -> [{c.text}]')
                    items.insert(k, ('I', I(f's_nop {worst - 1}')))
                    total += worst
                    inserted = True
                    branches = None
                    k += 1
                k += 1
            if not inserted:
                return total

    def text(self):
        out = []
        for t, x in self.items:
            if t == 'L':
                out.append(x + ':')
            elif t == 'C':
                out.append('    ' + x)
            else:
                out.append('    ' + x.text)
        return '\n'.join(out) + '\n'
```

```python
import sys, argparse
sys.path.insert(0, 'gen')
from asmir import Asm

NAME = 'standalone__sequential_behavior_din__recsys_kernel'

BLOB = 0
TS = 8208
RING = 8 * TS
SLOT = 4128
RINGW = 2 * SLOT
CT = RING + 8 * RINGW
CTS = 528
LIST = CT + 16 * CTS
IDXB = 1024
MSKB = 1664
LISTW = IDXB + MSKB
W2S = LIST + 8 * LISTW
LDS_TOTAL = W2S + 256
BETA = [0, 0, 32, 32]

V_LANE = 0
V_OUTA = 3
V_SEL = 4
V_TV1 = 8
V_IA = 12
V_MA = 13
V_CA = 14
V_Z = 15
V_TA = 16
V_SBF = 18
V_BA = 20
V_IDX = 24
V_B2S = 28
V_MSK = 32
V_D2 = 36
V_ACC = 40
V_W2R = 48
V_TR = 64
V_BOP = 80
V_X = 96
V_WE = 128

S_HIST, S_MASK, S_W1, S_TGT, S_B1, S_W2, S_B2, S_OUT = 4, 8, 12, 16, 20, 24, 28, 32
S_W = 36
S_RING = 37
S_LEFT = 38
S_N0 = 39
S_N1 = 40
S_BATCH = 41
S_ONE16 = 43
S_SCALE = 44
S_INV = 45
S_T0 = 46
S_STAMP = 48
S_KA = 64
S_WS = 80
S_BAL = 84
S_CS = 100


def q(b, n=4):
    return f'v[{b}:{b + n - 1}]'


def sq(b, n=4):
    return f's[{b}:{b + n - 1}]'


class Gen:
    def __init__(self, prof=False, opts=None):
        self.a = Asm()
        self.prof = prof
        self.o = opts or {}

    def stamp(self, k):
        if self.prof:
            self.a(f'''
            s_memtime s[46:47]
            s_waitcnt lgkmcnt(0)
            s_mov_b32 s{S_STAMP + k}, s46''')

    def dbg_srd(self, nbytes):
        self.a(f'''
        s_load_dwordx2 s[80:81], s[0:1], 72
        s_waitcnt lgkmcnt(0)
        s_mov_b32 s84, s80
        s_mov_b32 s85, s81
        s_mov_b32 s86, {nbytes}
        s_mov_b32 s87, 0x00020000''')

    def dbg_dump_lds(self):
        a = self.a
        a('s_cmp_lg_u32 s2, 0')
        a('s_cbranch_scc1 L_DBG_SKIP')
        self.dbg_srd(163840)
        a(f'''
        s_lshl_b32 s46, s{S_W}, 10
        v_lshlrev_b32 v1, 4, v0
        v_add_u32 v1, s46, v1
        s_mov_b32 s47, 0''')
        a.label('L_DBG_LOOP')
        a(f'''
        ds_read_b128 v[112:115], v1
        s_waitcnt lgkmcnt(0)
        buffer_store_dwordx4 v[112:115], v1, s[84:87], 0 offen
        s_waitcnt vmcnt(0)
        v_add_u32 v1, 0x2000, v1
        s_add_u32 s47, s47, 1
        s_cmp_lt_u32 s47, 20
        s_cbranch_scc1 L_DBG_LOOP''')
        a.label('L_DBG_SKIP')

    def dbg_dump_regs(self, r0, n, slot, tag):
        a = self.a
        a('s_cmp_lg_u32 s2, 0')
        a(f's_cbranch_scc1 L_DBGR_{tag}')
        self.dbg_srd(0x1000000)
        a(f'''
        s_lshl_b32 s46, s{S_W}, 15
        s_add_u32 s46, s46, {0x40000 + slot * 0x40000}
        v_lshlrev_b32 v2, 2, v0
        s_nop 7''')
        for k in range(n):
            a(f'buffer_store_dword v{r0 + k}, v2, s[84:87], s46 offen')
            a('s_add_u32 s46, s46, 256')
        a('s_waitcnt vmcnt(0)')
        a.label(f'L_DBGR_{tag}')

    def prologue(self):
        a = self.a
        o = self.o
        a(f"""
        s_cmp_ge_u32 s2, 256
        s_cbranch_scc1 L_END
        s_load_dwordx16 s[64:79], s[0:1], 0""")
        if self.prof:
            a(f"""
            s_load_dwordx4 s[80:83], s[0:1], 64
            s_memrealtime s[62:63]""")
        a(f"""
        v_lshrrev_b32 v1, 6, v0
        v_and_b32 v0, 63, v0
        v_readfirstlane_b32 s{S_W}, v1
        v_lshlrev_b32 v{V_OUTA}, 1, v0
        v_and_b32 v1, 15, v0
        v_lshrrev_b32 v2, 4, v0
        v_mov_b32 v110, 0x10000
        v_cmp_gt_u32 vcc, 8, v0
        s_lshl_b32 s46, s2, 4
        s_lshl_b32 s47, s{S_W}, 1
        s_add_u32 s42, s46, s47
        s_mul_i32 s{S_RING}, s{S_W}, {RINGW}
        s_add_u32 s{S_RING}, s{S_RING}, {RING}
        s_mul_i32 s38, s42, 400
        s_mul_i32 s39, s42, 51200
        s_lshl_b32 s40, s42, 8
        s_lshl_b32 s41, s2, 12
        v_cndmask_b32 v110, v110, v{V_OUTA}, vcc
        s_waitcnt lgkmcnt(0)""")
        if self.prof:
            a('s_mov_b32 s61, s62')
        self.stamp(0)
        a(f"""
        s_add_u32 s{S_MASK}, s68, s38
        s_addc_u32 s{S_MASK+1}, s69, 0
        s_movk_i32 s{S_MASK+2}, 800
        s_mov_b32 s{S_MASK+3}, 0x00020000""")
        for b in range(2):
            for p in range(4):
                off = 400 * b + 128 * p
                va = V_OUTA if p < 3 else 110
                a(f'buffer_load_ushort v{96 + 4*b + p}, v{va}, {sq(S_MASK)}, 0 offen offset:{off}')
        a(f"""
        s_mov_b32 s{S_W2}, s74
        s_mov_b32 s{S_W2+1}, s75
        s_movk_i32 s{S_W2+2}, 256
        s_mov_b32 s{S_W2+3}, 0x00020000
        s_mov_b32 s{S_B2}, s76
        s_mov_b32 s{S_B2+1}, s77
        s_mov_b32 s{S_B2+2}, 2
        s_mov_b32 s{S_B2+3}, 0x00020000
        s_mov_b32 s{S_B1}, s72
        s_mov_b32 s{S_B1+1}, s73
        s_movk_i32 s{S_B1+2}, 256
        s_mov_b32 s{S_B1+3}, 0x00020000
        s_mov_b32 s{S_W1}, s70
        s_mov_b32 s{S_W1+1}, s71
        s_mov_b32 s{S_W1+2}, 131072
        s_mov_b32 s{S_W1+3}, 0x00020000
        s_add_u32 s{S_TGT}, s64, s41
        s_addc_u32 s{S_TGT+1}, s65, 0
        s_movk_i32 s{S_TGT+2}, 4096
        s_mov_b32 s{S_TGT+3}, 0x00020000
        s_add_u32 s{S_HIST}, s66, s39
        s_addc_u32 s{S_HIST+1}, s67, 0
        s_mov_b32 s{S_HIST+2}, 102400
        s_mov_b32 s{S_HIST+3}, 0x00020000""")
        a(f"""
        s_and_b32 s46, s{S_W}, 1
        s_lshl_b32 s46, s46, 1
        v_add_u32 v111, s46, v2
        v_lshlrev_b32 v111, 2, v111
        v_xor_b32 v111, v1, v111
        v_lshlrev_b32 v111, 4, v111
        v_lshl_add_u32 v111, v2, 8, v111
        s_lshl_b32 s47, s{S_W}, 9
        v_add_u32 v111, s47, v111
        s_lshr_b32 s66, s{S_W}, 1
        s_lshl_b32 s67, s66, 10
        s_lshr_b32 s66, s66, 1
        s_lshl_b32 s66, s66, 5
        s_add_u32 s67, s67, s66
        s_add_u32 s67, s67, {CT}
        s_lshl_b32 s46, s46, 8
        s_add_u32 s66, s67, s46""")
        if not o.get('nobar0'):
            a('s_barrier')
        a(f"""
        s_mov_b32 m0, s66
        s_mov_b32 exec_hi, 0
        buffer_load_dwordx4 v111, {sq(S_TGT)}, 0 offen lds
        s_mov_b32 exec_hi, -1
        v_lshlrev_b32 v111, 2, v0
        v_mov_b32 v112, 0
        s_lshl_b32 s46, s{S_W}, 5
        v_lshlrev_b32 v113, 3, v2
        v_add_u32 v113, s46, v113
        buffer_load_dword v106, v111, {sq(S_W2)}, 0 offen
        buffer_load_ushort v107, v112, {sq(S_B2)}, 0 offen
        buffer_load_dwordx2 v[104:105], v113, {sq(S_B1)}, 0 offen""")
        W1B, W1C, W1A, W1D = 128, 144, 160, 176
        a(f"""
        s_lshl_b32 s46, s{S_W}, 12
        v_lshlrev_b32 v117, 4, v0
        v_add_u32 v117, s46, v117""")
        for base, row in ((W1B, 128), (W1C, 256), (W1A, 0), (W1D, 384)):
            a(f's_mov_b32 s46, {row * 256}')
            for i in range(4):
                a(f'buffer_load_dwordx4 {q(base + 4*i)}, v117, {sq(S_W1)}, s46 offen offset:{1024 * i}')
        a(f"""
        s_add_u32 s{S_OUT}, s78, s40
        s_addc_u32 s{S_OUT+1}, s79, 0
        s_movk_i32 s{S_OUT+2}, 512
        s_mov_b32 s{S_OUT+3}, 0x00020000""")
        a(f"""
        v_lshrrev_b32 v114, 2, v1
        v_and_b32 v115, 3, v1
        s_mul_i32 s64, s{S_W}, {LISTW}
        s_add_u32 s64, s64, {LIST}
        s_add_u32 s65, s64, {IDXB}
        v_lshlrev_b32 v120, 4, v0
        v_add_u32 v120, s64, v120
        v_mov_b32 v124, -1
        v_mov_b32 v125, -1
        v_mov_b32 v126, -1
        v_mov_b32 v127, -1
        ds_write_b128 v120, v[124:127]
        v_mov_b32 v64, 0
        v_mov_b32 v65, 0
        v_mov_b32 v66, 0
        v_mov_b32 v67, 0
        ds_write_b128 v120, v[64:67] offset:{IDXB}
        ds_write_b128 v120, v[64:67] offset:{IDXB + MSKB - 1024}""")
        a(f"""
        v_lshlrev_b32 v{V_IA}, 1, v2
        v_add_u32 v{V_IA}, s64, v{V_IA}
        v_lshlrev_b32 v{V_MA}, 4, v2
        v_add_u32 v{V_MA}, s65, v{V_MA}
        s_mul_i32 s46, s{S_W}, {2*CTS}
        s_add_u32 s46, s46, {CT}
        v_lshlrev_b32 v{V_CA}, 4, v2
        v_add_u32 v{V_CA}, s46, v{V_CA}
        v_lshlrev_b32 v121, 2, v2
        v_xor_b32 v{V_Z}, v1, v121
        v_lshlrev_b32 v{V_Z}, 4, v{V_Z}""")
        a(f"""
        v_lshlrev_b32 v121, 10, v114
        v_lshl_add_u32 v121, v115, 8, v121
        v_lshrrev_b32 v122, 3, v1
        v_lshl_add_u32 v121, v122, 5, v121
        v_lshl_add_u32 v121, v2, 4, v121
        v_add_u32 v121, s{S_RING}, v121""")
        for s in range(4):
            a(f"""
            v_xor_b32 v122, {s}, v115
            v_lshl_add_u32 v{V_BA+s}, v122, 6, v121""")
        a(f"""
        v_lshrrev_b32 v122, 1, v115
        v_lshl_add_u32 v122, v2, 1, v122
        v_lshlrev_b32 v123, 2, v114
        v_xor_b32 v122, v122, v123
        v_and_b32 v123, 1, v115
        v_lshlrev_b32 v123, 3, v123
        v_lshl_add_u32 v123, v114, 8, v123
        v_add_u32 v123, s{S_RING}, v123
        v_lshl_add_u32 v{V_TA}, v122, 4, v123
        v_xor_b32 v122, 8, v122
        v_lshl_add_u32 v{V_TA+1}, v122, 4, v123""")
        a('s_waitcnt vmcnt(20)')
        self.stamp(1)
        for k in range(8):
            a(f'v_lshlrev_b32 v{96+k}, 16, v{96+k}')
        for k in range(8):
            a(f'v_cmp_neq_f32 {sq(S_BAL + 2*k, 2)}, 0, v{96+k}')
        for k in range(8):
            a(f'v_add_u32 v{88+k}, {200 * (k // 4) + 64 * (k % 4)}, v0')
        for k in range(8):
            a(f"""
            v_mbcnt_lo_u32_b32 v{64+k}, s{S_BAL + 2*k}, 0
            v_mbcnt_hi_u32_b32 v{64+k}, s{S_BAL + 2*k + 1}, v{64+k}""")
        pos = [72, 73, 74, 75, 76, 77, 78, 79]
        a(f"""
        s_mov_b32 s{pos[0]}, 0
        s_bcnt1_i32_b64 s{pos[1]}, {sq(S_BAL, 2)}
        s_bcnt1_i32_b64 s46, {sq(S_BAL + 2, 2)}
        s_add_u32 s{pos[2]}, s{pos[1]}, s46
        s_bcnt1_i32_b64 s46, {sq(S_BAL + 4, 2)}
        s_add_u32 s{pos[3]}, s{pos[2]}, s46
        s_bcnt1_i32_b64 s46, {sq(S_BAL + 6, 2)}
        s_add_u32 s46, s{pos[3]}, s46
        s_add_u32 s46, s46, 15
        s_lshr_b32 s{S_N0}, s46, 4
        s_max_u32 s{S_N0}, s{S_N0}, 1
        s_lshl_b32 s{pos[4]}, s{S_N0}, 4
        s_bcnt1_i32_b64 s46, {sq(S_BAL + 8, 2)}
        s_add_u32 s{pos[5]}, s{pos[4]}, s46
        s_bcnt1_i32_b64 s46, {sq(S_BAL + 10, 2)}
        s_add_u32 s{pos[6]}, s{pos[5]}, s46
        s_bcnt1_i32_b64 s46, {sq(S_BAL + 12, 2)}
        s_add_u32 s{pos[7]}, s{pos[6]}, s46
        s_bcnt1_i32_b64 s46, {sq(S_BAL + 14, 2)}
        s_add_u32 s46, s{pos[7]}, s46
        s_sub_u32 s46, s46, s{pos[4]}
        s_add_u32 s46, s46, 15
        s_lshr_b32 s{S_N1}, s46, 4
        s_max_u32 s{S_N1}, s{S_N1}, 1""")
        for k in range(8):
            a(f"""
            s_lshl_b32 s46, s{pos[k]}, 1
            s_add_u32 s46, s46, s64
            v_lshl_add_u32 v{72+k}, v{64+k}, 1, s46
            s_lshl_b32 s47, s{pos[k]}, 2
            s_add_u32 s47, s47, s65
            v_lshl_add_u32 v{80+k}, v{64+k}, 2, s47""")
        for k in range(8):
            a(f"""
            s_mov_b64 exec, {sq(S_BAL + 2*k, 2)}
            ds_write_b16 v{72+k}, v{88+k}
            ds_write_b32 v{80+k}, v{96+k}""")
        a('s_mov_b64 exec, -1')
        for j in range(4):
            a(f'ds_read_u16 v{V_IDX+j}, v{V_IA} offset:{8*j}')
        for j in range(4):
            a(f'ds_read_u16 v{120+j}, v{V_IA} offset:{32 + 8*j}')
        a('s_waitcnt lgkmcnt(4)')
        for j in range(4):
            a(f"""
            s_add_u32 m0, s{S_RING}, {j*1024 + BETA[j]}
            v_lshl_add_u32 v{V_IDX+j}, v{V_IDX+j}, 8, v{V_Z}
            buffer_load_dwordx4 v{V_IDX+j}, {sq(S_HIST)}, 0 offen nt lds""")
        a('s_waitcnt lgkmcnt(0)')
        for j in range(4):
            a(f"""
            s_add_u32 m0, s{S_RING}, {SLOT + j*1024 + BETA[j]}
            v_lshl_add_u32 v{120+j}, v{120+j}, 8, v{V_Z}
            buffer_load_dwordx4 v{120+j}, {sq(S_HIST)}, 0 offen nt lds""")
        self.stamp(2)
        a(f"""
        v_lshrrev_b32 v64, 1, v1
        v_and_b32 v65, 1, v2
        v_lshlrev_b32 v65, 2, v65
        v_sub_u32 v64, v64, v65
        v_and_b32 v65, 1, v1
        v_lshlrev_b32 v65, 4, v65
        v_mov_b32 v66, 0x0d0c
        v_lshlrev_b32 v66, v65, v66""")
        for i in range(4):
            a(f"""
            v_cmp_eq_u32 vcc, {i}, v64
            v_cndmask_b32 v67, 0, v66, vcc
            v_xor_b32 v{V_SEL+i}, 0x0c0c0c0c, v67""")
        SP, SN = 64, 70
        a(f"""
        v_and_b32 v76, 1, v114
        v_lshlrev_b32 v76, 4, v76
        v_mov_b32 v77, 0x3f80
        v_lshlrev_b32 v77, v76, v77
        v_cmp_eq_u32 vcc, v115, v2
        v_cndmask_b32 v77, 0, v77, vcc
        v_cmp_gt_u32 vcc, 2, v114
        v_mov_b32 v{SP}, 0
        v_mov_b32 v{SP+1}, 0
        v_cndmask_b32 v{SP+2}, 0, v77, vcc
        v_cndmask_b32 v{SP+3}, v77, 0, vcc
        v_mov_b32 v{SP+4}, 0
        v_mov_b32 v{SP+5}, 0
        v_mov_b32 v{SN}, 0
        v_mov_b32 v{SN+1}, 0
        v_lshlrev_b32 v76, 8, v{SP+2}
        v_and_b32 v76, 0x80008000, v76
        v_or_b32 v{SN+2}, v{SP+2}, v76
        v_lshlrev_b32 v76, 8, v{SP+3}
        v_and_b32 v76, 0x80008000, v76
        v_or_b32 v{SN+3}, v{SP+3}, v76
        v_mov_b32 v{SN+4}, 0
        v_mov_b32 v{SN+5}, 0""")
        a(f"""
        s_waitcnt vmcnt(24)
        v_lshlrev_b32 v76, 16, v106
        v_and_b32 v77, 0xffff0000, v106
        v_and_b32 v78, 0x7fffffff, v76
        v_and_b32 v79, 0x7fffffff, v77
        v_max_u32 v78, v78, v79
        v_max_u32_dpp v78, v78, v78 row_shr:1 row_mask:0xf bank_mask:0xf
        v_lshlrev_b32 v107, 16, v107
        v_lshlrev_b32 v112, 16, v104
        v_max_u32_dpp v78, v78, v78 row_shr:2 row_mask:0xf bank_mask:0xf
        v_and_b32 v113, 0xffff0000, v104
        v_lshlrev_b32 v114, 16, v105
        v_max_u32_dpp v78, v78, v78 row_shr:4 row_mask:0xf bank_mask:0xf
        v_and_b32 v115, 0xffff0000, v105
        s_mov_b32 s{S_ONE16}, 0x3c003c00
        s_mov_b32 s100, 0xbfb8aa3b
        s_mov_b32 s101, 0xbfb8aa3b
        v_max_u32_dpp v78, v78, v78 row_shr:8 row_mask:0xf bank_mask:0xf
        v_pk_mul_f32 v[112:113], v[112:113], s[100:101]
        v_pk_mul_f32 v[114:115], v[114:115], s[100:101]
        v_readlane_b32 s46, v78, 15
        v_readlane_b32 s47, v78, 31
        v_readlane_b32 s72, v78, 47
        v_readlane_b32 s73, v78, 63
        s_max_u32 s46, s46, s47
        s_max_u32 s72, s72, s73
        s_max_u32 s46, s46, s72
        s_lshr_b32 s46, s46, 23
        s_max_u32 s46, s46, 81
        s_sub_u32 s47, 268, s46
        s_lshl_b32 s{S_SCALE}, s47, 23
        s_sub_u32 s47, s46, 14
        s_lshl_b32 s{S_INV}, s47, 23
        v_mul_f32 v76, s{S_SCALE}, v76
        v_mul_f32 v77, s{S_SCALE}, v77
        v_cvt_pk_f16_f32 v76, v76, v77
        v_add_u32 v79, {W2S}, v111
        ds_write_b32 v79, v76
        v_lshlrev_b32 v79, 3, v2
        v_add_u32 v79, {W2S}, v79""")
        for qq in range(4):
            a(f'ds_read2_b64 {q(V_W2R + 4*qq)}, v79 offset0:{8*qq} offset1:{8*qq+4}')
        a(f"""
        v_mul_f32 v{V_B2S}, s{S_SCALE}, v107
        v_mov_b32 v{V_B2S+1}, v{V_B2S}
        v_mov_b32 v{V_B2S+2}, v{V_B2S}
        v_mov_b32 v{V_B2S+3}, v{V_B2S}""")
        a(f"""
        v_lshrrev_b32 v110, 1, v1
        v_mul_u32_u24 v110, {TS}, v110
        v_and_b32 v111, 1, v1
        v_lshl_add_u32 v110, v111, 7, v110
        v_lshl_add_u32 v110, v2, 4, v110
        s_lshr_b32 s46, s{S_W}, 1
        s_lshl_b32 s46, s46, 11
        s_and_b32 s47, s{S_W}, 1
        s_lshl_b32 s72, s47, 8
        s_add_u32 s72, s72, s46
        s_lshl_b32 s73, s47, 10
        s_add_u32 s73, s73, s46
        v_add_u32 v111, s73, v110
        v_add_u32 v110, s72, v110""")
        QA = [192 + 4 * k for k in range(8)]
        QB = [224 + 4 * k for k in range(8)]

        def sel(S, half):
            return q(S + 2 if half == 0 else S)

        def scale_cvt(quads):
            for k in range(8):
                r = quads[k]
                a(f'v_pk_mul_f32 {q(r,2)}, {q(r,2)}, s[100:101]')
                a(f'v_pk_mul_f32 {q(r+2,2)}, {q(r+2,2)}, s[100:101]')
            for k in range(8):
                r = quads[k]
                a(f'v_cvt_pk_bf16_f32 v{r}, v{r}, v{r+1}')
                a(f'v_cvt_pk_bf16_f32 v{r+1}, v{r+2}, v{r+3}')

        a('s_waitcnt vmcnt(16)')
        self.stamp(3)
        for k in range(8):
            i, h = k >> 1, k & 1
            a(f'v_mfma_f32_16x16x32_bf16 {q(QA[k])}, {sel(SP,h)}, {q(W1B + 4*i)}, 0')
        for k in range(8):
            i, h = k >> 1, k & 1
            a(f'v_mfma_f32_16x16x32_bf16 {q(QA[k])}, {sel(SN,h)}, {q(W1C + 4*i)}, {q(QA[k])}')
        for k in range(8):
            i, h = k >> 1, k & 1
            a(f'v_mfma_f32_16x16x32_bf16 {q(QB[k])}, {sel(SP,h)}, {q(W1C + 4*i)}, 0')
        scale_cvt(QA)
        for k in range(8):
            i, h = k >> 1, k & 1
            a(f'ds_write_b64 v111, {q(QA[k],2)} offset:{(i >> 1)*256 + (i & 1)*8 + h*64}')
        a('s_waitcnt lgkmcnt(0)')
        a('s_barrier')
        TF, WF = 80, 128
        a(f's_sub_u32 s46, {CT}, s{S_RING}')
        for s in range(4):
            a(f'v_add_u32 v{116+s}, s46, v{V_BA+s}')
        for s in range(4):
            a(f'ds_read_b128 {q(TF + 4*s)}, v{116+s}')
        a(f"""
        s_mul_i32 s46, s{S_W}, {TS}
        v_lshrrev_b32 v120, 1, v2
        v_lshlrev_b32 v120, 10, v120
        v_and_b32 v121, 1, v2
        v_lshl_add_u32 v120, v121, 8, v120
        v_lshl_add_u32 v120, v1, 4, v120
        v_add_u32 v120, s46, v120""")
        for s in range(4):
            a(f'ds_read_b128 {q(WF + 4*s)}, v120 offset:{s*2048}')
        a(f"""
        v_lshrrev_b32 v121, 2, v1
        v_and_b32 v122, 3, v1
        v_lshlrev_b32 v122, 1, v122
        v_lshl_add_u32 v121, v121, 4, v122
        s_and_b32 s72, s{S_W}, 1
        s_lshl_b32 s72, s72, 1""")
        for bb in range(2):
            lo = V_D2 if bb == 0 else V_TV1
            hi = V_MSK if bb == 0 else V_ACC
            for s in range(4):
                a(f"""
                s_add_u32 s73, s72, {bb}
                s_xor_b32 s73, s73, {s}
                s_lshl_b32 s73, s73, 6
                s_add_u32 s73, s73, s66
                v_add_u32 v122, s73, v121
                ds_read_u16 v{lo+s}, v122 offset:{256*bb}
                ds_read_u16 v{hi+s}, v122 offset:{256*bb + 8}""")
        a('s_waitcnt vmcnt(12)')
        for k in range(8):
            i, h = k >> 1, k & 1
            a(f'v_mfma_f32_16x16x32_bf16 {q(QB[k])}, {sel(SP,h)}, {q(W1A + 4*i)}, {q(QB[k])}')
        a('s_waitcnt lgkmcnt(0)')
        for s in range(4):
            c = q(112)
            a(f'v_mfma_f32_16x16x32_bf16 {q(112)}, {q(WF + 4*s)}, {q(TF + 4*s)}, {c}')
        for s in range(4):
            a(f'v_lshl_or_b32 v{V_D2+s}, v{V_MSK+s}, 16, v{V_D2+s}')
            a(f'v_lshl_or_b32 v{V_TV1+s}, v{V_ACC+s}, 16, v{V_TV1+s}')
        a('s_barrier')
        scale_cvt(QB)
        for k in range(8):
            i, h = k >> 1, k & 1
            a(f'ds_write_b64 v110, {q(QB[k],2)} offset:{(i & 1)*1024 + (i >> 1)*8 + h*64 + 512}')
        a(f"""
        s_lshl_b32 s46, s{S_W}, 6
        s_add_u32 s46, s46, {CT}
        v_mul_u32_u24 v111, {CTS}, v1
        v_lshl_add_u32 v111, v2, 4, v111
        v_add_u32 v111, s46, v111
        ds_write_b128 v111, v[112:115]
        s_waitcnt vmcnt(8)""")
        for k in range(8):
            i, h = k >> 1, k & 1
            a(f'v_mfma_f32_16x16x32_bf16 {q(QA[k])}, {sel(SP,h)}, {q(W1D + 4*i)}, 0')
        a(f"""
        s_mov_b32 s{S_BATCH}, 0
        s_mov_b32 s{S_LEFT}, s{S_N0}""")
        scale_cvt(QA)
        for k in range(8):
            i, h = k >> 1, k & 1
            a(f'ds_write_b64 v110, {q(QA[k],2)} offset:{(i & 1)*1024 + (i >> 1)*8 + h*64}')
        a('s_waitcnt lgkmcnt(0)')
        self.stamp(4)
        a('s_barrier')
        self.stamp(5)
        if self.o.get('dbg'):
            a('s_waitcnt vmcnt(0)')
            self.dbg_dump_lds()
            a('s_barrier')

    def build(self):
        a = self.a
        TV = V_D2
        AO = lambda s, P: V_TR + 8 * (s & 1) + 4 * P
        BW = lambda n, P: V_BOP + 8 * (n % 4) + 4 * P
        DB = [112, 120, V_ACC]
        LB = 1
        a(f'''
        v_lshlrev_b32 v{LB}, 4, v{V_LANE}
        s_mov_b32 vcc_lo, -1
        s_mov_b32 vcc_hi, 0''')
        a('v_mov_b32 v2, 0x3f803f80')
        for s in range(4):
            a(f'v_cndmask_b32 v{TV+s}, v2, v{TV+s}, vcc')

        def reads(n):
            s, T = n // 8, n % 8
            for P in range(2):
                a(f'ds_read_b128 {q(BW(n, P))}, v{LB} offset:{T*TS + s*2048 + P*1024}')

        def aops(s):
            for i in range(4):
                a(f'v_perm_b32 v{AO(s,0)+i}, v{TV+s}, v{TV+s}, v{V_SEL+i}')
            a(f'v_lshrrev_b32 v2, 16, v{TV+s}')
            for i in range(4):
                a(f'v_perm_b32 v{AO(s,1)+i}, v2, v2, v{V_SEL+i}')

        def cvts(n):
            s, T = n // 8, n % 8
            d = DB[n % 3]
            w = V_WE + 16 * T + 4 * s
            a(f'v_cvt_pk_bf16_f32 v{w}, v{d}, v{d+1}')
            a(f'v_cvt_pk_bf16_f32 v{w+1}, v{d+2}, v{d+3}')
            a(f'v_cvt_pk_bf16_f32 v{w+2}, v{d+4}, v{d+5}')
            a(f'v_cvt_pk_bf16_f32 v{w+3}, v{d+6}, v{d+7}')

        for n in range(3):
            reads(n)
        aops(0)
        for n in range(32):
            s, T = n // 8, n % 8
            if n + 3 < 32:
                reads(n + 3)
                a('s_waitcnt lgkmcnt(6)')
            else:
                a(f's_waitcnt lgkmcnt({2 * (31 - n)})')
            d = DB[n % 3]
            for P in range(2):
                a(f'v_mfma_f32_16x16x32_bf16 {q(d + 4*P)}, {q(AO(s,P))}, {q(BW(n,P))}, 0')
            if n >= 2:
                cvts(n - 2)
            if T == 3 and s < 3:
                aops(s + 1)
        cvts(30)
        cvts(31)
        for i in range(8):
            a(f'v_mov_b32 v{V_ACC+i}, 0')

    def x(self, qq, t=0):
        return V_X + 8 * qq + 4 * t

    def rd_bop(self, par):
        return [f'ds_read_b128 {q(V_BOP + 4*s)}, v{V_BA+s} offset:{SLOT*par}' for s in range(4)]

    def rd_c(self, qq):
        return [f'ds_read_b128 {q(self.x(qq,t))}, v{V_CA} offset:{128*qq + 64*t}' for t in range(2)]

    def rd_tr(self, par):
        out = []
        for qq in range(4):
            for dh in range(2):
                r = V_TR + 4 * qq + 2 * dh
                out.append(f'ds_read_b64_tr_b16 {q(r,2)}, v{V_TA+dh} offset:{SLOT*par + qq*1024 + BETA[qq]}')
        return out

    def gemm1(self, qq):
        out = []
        for s in range(4):
            for t in range(2):
                T = 2 * qq + t
                xr = q(self.x(qq, t))
                out.append(f'v_mfma_f32_16x16x32_bf16 {xr}, {q(V_WE + 16*T + 4*s)}, {q(V_BOP + 4*s)}, {xr}')
        return out

    def sigmoid(self, qq):
        x = self.x(qq)
        e = [f'v_exp_f32 v{x+i}, v{x+i}' for i in range(8)]
        c = [f'v_cvt_pk_f16_f32 v{x+i}, v{x+2*i}, v{x+2*i+1}' for i in range(4)]
        ad = [f'v_pk_add_f16 v{x+i}, v{x+i}, s{S_ONE16}' for i in range(4)]
        r0 = [f'v_rcp_f16_sdwa v{x+i}, v{x+i} dst_sel:WORD_0 dst_unused:UNUSED_PRESERVE src0_sel:WORD_0' for i in range(4)]
        r1 = [f'v_rcp_f16_sdwa v{x+i}, v{x+i} dst_sel:WORD_1 dst_unused:UNUSED_PRESERVE src0_sel:WORD_1' for i in range(4)]
        return e, c, ad, r0 + r1

    def reducer(self, qq):
        c = q(V_B2S) if qq == 0 else q(V_D2)
        return f'v_mfma_f32_16x16x32_f16 {q(V_D2)}, {q(self.x(qq))}, {q(V_W2R + 4*qq)}, {c}'

    def finalize(self):
        return [f'v_pk_mul_f32 {q(V_D2,2)}, {q(V_D2,2)}, {q(V_MSK,2)}',
                f'v_pk_mul_f32 {q(V_D2+2,2)}, {q(V_D2+2,2)}, {q(V_MSK+2,2)}',
                f'v_cvt_pk_bf16_f32 v{V_SBF}, v{V_D2}, v{V_D2+1}',
                f'v_cvt_pk_bf16_f32 v{V_SBF+1}, v{V_D2+2}, v{V_D2+3}']

    def gemv(self):
        out = []
        for qq in range(4):
            for dh in range(2):
                acc = q(V_ACC + 4 * dh)
                out.append(f'v_mfma_f32_4x4x4_16b_bf16 {acc}, {q(V_SBF,2)}, {q(V_TR + 4*qq + 2*dh, 2)}, {acc} cbsz:4 abid:{4*qq}')
        return out

    def phase(self, mf, sig, pre=(), mid=()):
        a = self.a
        e, c, ad, r = sig
        seq = [mf[0], e[0], e[1]] + list(pre) + [mf[1], e[2], e[3], mf[2], e[4], e[5], mf[3], e[6], e[7],
               mf[4], c[0], c[1], mf[5], c[2], c[3], mf[6]] + ad + [mf[7]] + list(mid) + r
        for s in seq:
            a(s)

    def tile(self, par, first, tag):
        a = self.a
        io = 32 * par
        if first:
            a('s_waitcnt vmcnt(4)')
            if par == 0:
                self.stamp_once(6)
            for s in [self.rd_c(0)[0]] + self.rd_bop(par)[:1] + [self.rd_c(0)[1]] + self.rd_bop(par)[1:] + self.rd_c(1) + self.rd_c(2):
                a(s)
        a('s_waitcnt lgkmcnt(4)')
        for s in self.gemm1(0):
            a(s)
        tr = self.rd_tr(par)
        idx = [f'ds_read_u16 v{V_IDX+j}, v{V_IA} offset:{io + 64 + 8*j}' for j in range(4)]
        if not first:
            for s in self.finalize():
                a(s)
            for s in idx[:2]:
                a(s)
            g = self.gemv()
            a(g[0]); a(g[1]); a(idx[2]); a(g[2]); a(g[3]); a(idx[3]); a(g[4]); a(g[5]); a(tr[0]); a(g[6]); a(g[7])
            for s in tr[1:]:
                a(s)
        else:
            for s in idx + tr:
                a(s)
        for s in self.rd_c(3):
            a(s)
        a(f'ds_read_b128 {q(V_MSK)}, v{V_MA} offset:{64*par}')
        a('s_waitcnt lgkmcnt(15)')
        dma = []
        for j in range(4):
            dma += [f's_add_u32 m0, s{S_RING}, {SLOT*par + j*1024 + BETA[j]}',
                    f'v_lshl_add_u32 v{V_IDX+j}, v{V_IDX+j}, 8, v{V_Z}',
                    f'buffer_load_dwordx4 v{V_IDX+j}, {sq(S_HIST)}, 0 offen nt lds']
        self.phase(self.gemm1(1), self.sigmoid(0), mid=['s_waitcnt lgkmcnt(3)'] + dma)
        if par == 1:
            a(f'v_add_u32 v{V_IA}, 64, v{V_IA}')
        self.phase(self.gemm1(2), self.sigmoid(1), pre=[self.reducer(0)])
        a('s_waitcnt lgkmcnt(0)')
        if par == 1:
            a(f'v_add_u32 v{V_MA}, 0x80, v{V_MA}')
        self.phase(self.gemm1(3), self.sigmoid(2), pre=[self.reducer(1)])
        a(f'''
        s_sub_u32 s{S_LEFT}, s{S_LEFT}, 1
        s_cmp_eq_u32 s{S_LEFT}, 0
        s_cbranch_scc1 L_DRAIN''')

    def s4(self, par):
        a = self.a
        e, c, ad, r = self.sigmoid(3)
        nb = self.rd_bop(par ^ 1)
        a(e[0]); a(e[1]); a(self.reducer(2))
        a('s_waitcnt vmcnt(4)')
        for s in [self.rd_c(0)[0], nb[0], self.rd_c(0)[1]] + nb[1:] + self.rd_c(1) + self.rd_c(2):
            a(s)
        for s in e[2:] + c + ad + r:
            a(s)
        a('s_nop 1')
        a(self.reducer(3))

    def stamp_once(self, k):
        pass

    def drain(self):
        a = self.a
        a.label('L_DRAIN')
        e, c, ad, r = self.sigmoid(3)
        a(e[0]); a(e[1]); a(self.reducer(2))
        for s in e[2:] + c + ad + r:
            a(s)
        a(self.reducer(3))
        for s in self.finalize():
            a(s)
        g = self.gemv()
        for s in g:
            a(s)
        a(f'''
        v_mul_f32 v1, s{S_INV}, v{V_ACC}
        v_mul_f32 v2, s{S_INV}, v{V_ACC+4}
        v_cvt_pk_bf16_f32 v1, v1, v2
        s_lshl_b32 s46, s{S_BATCH}, 8
        buffer_store_short v1, v{V_OUTA}, {sq(S_OUT)}, s46 offen
        buffer_store_short_d16_hi v1, v{V_OUTA}, {sq(S_OUT)}, s46 offen offset:128
        s_cmp_eq_u32 s{S_BATCH}, 1
        s_cbranch_scc1 L_FIN
        s_mov_b32 s{S_BATCH}, 1
        s_mov_b32 s{S_LEFT}, s{S_N1}
        v_add_u32 v{V_CA}, {CTS}, v{V_CA}''')
        for s in range(4):
            a(f'v_mov_b32 v{V_D2+s}, v{V_TV1+s}')
        self.stamp(8)
        a('s_branch L_BUILD')

    def finish(self):
        a = self.a
        a.label('L_FIN')
        if self.prof:
            self.stamp(10)
            a(f'''
            s_memrealtime s[46:47]
            s_waitcnt vmcnt(0) lgkmcnt(0)
            s_mov_b32 s60, s46
            s_lshl_b32 s46, s2, 3
            s_add_u32 s46, s46, s{S_W}
            s_lshl_b32 s46, s46, 6
            s_add_u32 s84, s82, s46
            s_addc_u32 s85, s83, 0
            s_movk_i32 s86, 64
            s_mov_b32 s87, 0x00020000
            v_mov_b32 v1, 0''')
            for k in range(16):
                a(f'v_writelane_b32 v1, s{S_STAMP + k}, {k}')
            a(f'''
            v_lshlrev_b32 v2, 2, v0
            buffer_store_dword v1, v2, s[84:87], 0 offen
            s_waitcnt vmcnt(0)''')
        a.label('L_END')
        a('s_endpgm')

    def gen(self):
        a = self.a
        self.prologue()
        a.label('L_BUILD')
        self.build()
        if self.prof:
            a(f'''
            s_memtime s[46:47]
            s_waitcnt lgkmcnt(0)
            s_cmp_eq_u32 s{S_BATCH}, 0
            s_cselect_b32 s{S_STAMP+6}, s46, s{S_STAMP+6}
            s_mov_b32 s{S_STAMP+9}, s46''')
        if self.o.get('dbg'):
            a('s_cmp_eq_u32 s41, 1')
            a('s_cbranch_scc1 L_DBG_B1')
            self.dbg_dump_regs(V_WE, 128, 0, 'we')
            a.label('L_DBG_B1')
        a(f'''
        s_and_b32 s46, s{S_N0}, s{S_BATCH}
        s_cmp_eq_u32 s46, 1
        s_cbranch_scc1 L_FIRST1''')
        a.label('L_FIRST0')
        self.tile(0, True, 'f0')
        self.s4(0)
        a('s_branch L_BODY1')
        a.label('L_FIRST1')
        self.tile(1, True, 'f1')
        self.s4(1)
        a.label('L_BODY0')
        self.tile(0, False, 'b0')
        self.s4(0)
        a.label('L_BODY1')
        self.tile(1, False, 'b1')
        self.s4(1)
        a('s_branch L_BODY0')
        self.drain()
        self.finish()
        nn = a.fix_hazards(verbose=self.o.get('verbose', False))
        return nn


HEADER = '''; DIN local activation unit (B=4096, L=200, D=H=128), gfx950.
; @launch grid=(256,1,1) block=(512,1,1) lds={lds}
.amdgcn_target "amdgcn-amd-amdhsa--gfx950"
.text
.globl {name}
.p2align 8
.type {name},@function
{name}:
'''
FOOTER = '''.section .rodata,"a"
.p2align 6
.amdhsa_kernel {name}
  .amdhsa_next_free_vgpr 256
  .amdhsa_next_free_sgpr 102
  .amdhsa_accum_offset 256
  .amdhsa_group_segment_fixed_size 0
  .amdhsa_kernarg_size 80
  .amdhsa_user_sgpr_count 2
  .amdhsa_user_sgpr_kernarg_segment_ptr 1
  .amdhsa_system_sgpr_workgroup_id_x 1
.end_amdhsa_kernel
'''


def main():
    ap = argparse.ArgumentParser()
    ap.add_argument('-o', default='standalone__sequential_behavior_din__recsys.s')
    ap.add_argument('--prof', action='store_true')
    ap.add_argument('-v', action='store_true')
    ap.add_argument('--opt', action='append', default=[])
    args = ap.parse_args()
    opts = {'verbose': args.v}
    for o in args.opt:
        k, _, v = o.partition('=')
        opts[k] = int(v) if v else 1
    g = Gen(prof=args.prof, opts=opts)
    nn = g.gen()
    txt = HEADER.format(lds=LDS_TOTAL, name=NAME) + g.a.text() + FOOTER.format(name=NAME)
    open(args.o, 'w').write(txt)
    n = sum(1 for t, _ in g.a.items if t == 'I')
    print(f'wrote {args.o}: {n} instrs, {nn} nop states inserted, LDS {LDS_TOTAL}')


if __name__ == '__main__':
    main()
```

```python
import sys, argparse
sys.path.insert(0, 'gen')
from asmir import Asm

NAME = 'standalone__sequential_behavior_din__recsys_kernel'

BLOB = 0
TS = 8208
RING = 8 * TS
SLOT = 4128
RINGW = 2 * SLOT
CT = RING + 8 * RINGW
CTS = 528
LIST = CT + 16 * CTS
IDXB = 896
LISTW = 1920
W2S = LIST + 8 * LISTW
TT = W2S + 256
LDS_TOTAL = TT + 4160
BETA = [0, 0, 32, 32]

V_LANE = 0
V_OUTA = 3
V_SEL = 4
V_TV1 = 8
V_IA = 12
V_MA = 13
V_CA = 14
V_Z = 15
V_TA = 16
V_SBF = 18
V_BA = 20
V_IDX = 24
V_B2S = 28
V_MSK = 32
V_D2 = 36
V_ACC = 40
V_W2R = 48
V_TR = 64
V_BOP = 80
V_X = 96
V_WE = 128

S_HIST, S_MASK, S_W1, S_TGT, S_B1, S_W2, S_B2, S_OUT = 4, 8, 12, 16, 20, 24, 28, 32
S_W = 36
S_RING = 37
S_LEFT = 38
S_N0 = 39
S_N1 = 40
S_BATCH = 41
S_SWC = 42
S_ONE16 = 43
S_SCALE = 44
S_INV = 45
S_T0 = 46
S_STAMP = 48
S_KA = 64
S_WS = 80
S_BAL = 84
S_CS = 100


def q(b, n=4):
    return f'v[{b}:{b + n - 1}]'


def sq(b, n=4):
    return f's[{b}:{b + n - 1}]'


class Gen:
    def __init__(self, prof=False, opts=None):
        self.a = Asm()
        self.prof = prof
        self.o = opts or {}

    def stamp(self, k):
        if self.prof:
            self.a(f'''
            s_memtime s[46:47]
            s_waitcnt lgkmcnt(0)
            s_mov_b32 s{S_STAMP + k}, s46''')

    def dbg_srd(self, nbytes):
        self.a(f'''
        s_load_dwordx2 s[80:81], s[0:1], 72
        s_waitcnt lgkmcnt(0)
        s_mov_b32 s84, s80
        s_mov_b32 s85, s81
        s_mov_b32 s86, {nbytes}
        s_mov_b32 s87, 0x00020000''')

    def dbg_dump_lds(self):
        a = self.a
        a('s_cmp_lg_u32 s2, 0')
        a('s_cbranch_scc1 L_DBG_SKIP')
        self.dbg_srd(163840)
        a(f'''
        s_lshl_b32 s46, s{S_W}, 10
        v_lshlrev_b32 v1, 4, v0
        v_add_u32 v1, s46, v1
        s_mov_b32 s47, 0''')
        a.label('L_DBG_LOOP')
        a(f'''
        ds_read_b128 v[112:115], v1
        s_waitcnt lgkmcnt(0)
        buffer_store_dwordx4 v[112:115], v1, s[84:87], 0 offen
        s_waitcnt vmcnt(0)
        v_add_u32 v1, 0x2000, v1
        s_add_u32 s47, s47, 1
        s_cmp_lt_u32 s47, 20
        s_cbranch_scc1 L_DBG_LOOP''')
        a.label('L_DBG_SKIP')

    def dbg_dump_regs(self, r0, n, slot, tag):
        a = self.a
        a('s_cmp_lg_u32 s2, 0')
        a(f's_cbranch_scc1 L_DBGR_{tag}')
        self.dbg_srd(0x1000000)
        a(f'''
        s_lshl_b32 s46, s{S_W}, 15
        s_add_u32 s46, s46, {0x40000 + slot * 0x40000}
        v_lshlrev_b32 v2, 2, v0
        s_nop 7''')
        for k in range(n):
            a(f'buffer_store_dword v{r0 + k}, v2, s[84:87], s46 offen')
            a('s_add_u32 s46, s46, 256')
        a('s_waitcnt vmcnt(0)')
        a.label(f'L_DBGR_{tag}')

    def prologue(self):
        a = self.a
        o = self.o
        a(f"""
        s_cmp_ge_u32 s2, 256
        s_cbranch_scc1 L_END
        s_load_dwordx16 s[64:79], s[0:1], 0""")
        if self.prof:
            a(f"""
            s_load_dwordx4 s[80:83], s[0:1], 64
            s_memrealtime s[62:63]
            s_memtime s[54:55]""")
        a(f"""
        v_lshrrev_b32 v1, 6, v0
        v_and_b32 v0, 63, v0
        v_readfirstlane_b32 s{S_W}, v1
        v_and_b32 v1, 15, v0
        v_lshrrev_b32 v2, 4, v0
        v_lshlrev_b32 v{V_OUTA}, 1, v0
        v_mov_b32 v124, 0x100000
        v_cmp_gt_u32 vcc, 4, v0
        s_lshr_b32 s46, s2, 3
        s_lshl_b32 s46, s46, 3
        s_add_u32 s46, s46, s{S_W}
        s_and_b32 s46, s46, 0xff
        s_lshl_b32 s46, s46, 9
        v_lshlrev_b32 v127, 7, v0
        v_add_u32 v127, s46, v127
        v_cndmask_b32 v127, v124, v127, vcc
        v_cmp_gt_u32 vcc, 8, v0
        s_lshl_b32 s46, s2, 4
        s_lshl_b32 s47, s{S_W}, 1
        s_add_u32 s42, s46, s47
        v_cndmask_b32 v124, v124, v{V_OUTA}, vcc
        s_mul_i32 s{S_RING}, s{S_W}, {RINGW}
        s_add_u32 s{S_RING}, s{S_RING}, {RING}
        s_mul_i32 s38, s42, 400
        s_mul_i32 s39, s42, 51200
        s_lshl_b32 s40, s42, 8
        s_lshl_b32 s41, s2, 12
        s_and_b32 s46, s{S_W}, 1
        s_lshl_b32 s46, s46, 1
        v_add_u32 v125, s46, v2
        v_lshlrev_b32 v125, 2, v125
        v_xor_b32 v125, v1, v125
        v_lshlrev_b32 v125, 4, v125
        v_lshl_add_u32 v125, v2, 8, v125
        s_lshl_b32 s47, s{S_W}, 9
        v_add_u32 v125, s47, v125
        s_lshr_b32 s52, s{S_W}, 1
        s_lshl_b32 s53, s52, 10
        s_lshr_b32 s52, s52, 1
        s_lshl_b32 s52, s52, 5
        s_add_u32 s53, s53, s52
        s_lshl_b32 s46, s46, 8
        s_add_u32 s53, s53, s46
        s_add_u32 s45, s53, {TT}
        v_lshlrev_b32 v111, 2, v0
        v_mov_b32 v112, 0
        s_lshl_b32 s46, s{S_W}, 5
        v_lshlrev_b32 v113, 3, v2
        v_add_u32 v113, s46, v113
        v_and_b32 v110, 1, v0
        v_mul_u32_u24 v110, 51200, v110
        s_mov_b32 s{S_W1+2}, 131072
        s_mov_b32 s{S_W1+3}, 0x00020000
        s_movk_i32 s{S_MASK+2}, 800
        s_mov_b32 s{S_MASK+3}, 0x00020000
        s_movk_i32 s{S_TGT+2}, 4096
        s_mov_b32 s{S_TGT+3}, 0x00020000
        s_movk_i32 s{S_W2+2}, 256
        s_mov_b32 s{S_W2+3}, 0x00020000
        s_mov_b32 s{S_B2+2}, 2
        s_mov_b32 s{S_B2+3}, 0x00020000
        s_movk_i32 s{S_B1+2}, 256
        s_mov_b32 s{S_B1+3}, 0x00020000
        s_mov_b32 s{S_HIST+2}, 102400
        s_mov_b32 s{S_HIST+3}, 0x00020000
        s_mov_b32 m0, s45
        s_waitcnt lgkmcnt(0)""")
        if self.prof:
            a('s_memtime s[58:59]')
        a(f"""
        s_add_u32 s{S_MASK}, s68, s38
        s_addc_u32 s{S_MASK+1}, s69, 0
        s_mov_b32 s{S_W1}, s70
        s_mov_b32 s{S_W1+1}, s71""")
        for b in range(2):
            for p in range(4):
                off = 400 * b + 128 * p
                va = V_OUTA if p < 3 else 124
                a(f'buffer_load_short_d16_hi v{96 + 4*b + p}, v{va}, {sq(S_MASK)}, 0 offen offset:{off}')
        nsmall = 8
        if not o.get('nopf'):
            a(f'buffer_load_dword v127, v127, {sq(S_W1)}, 0 offen')
            nsmall += 1
        a(f"""
        s_add_u32 s{S_TGT}, s64, s41
        s_addc_u32 s{S_TGT+1}, s65, 0
        s_mov_b32 exec_hi, 0
        buffer_load_dwordx4 v125, {sq(S_TGT)}, 0 offen lds
        s_mov_b32 exec_hi, -1
        s_mov_b32 s{S_W2}, s74
        s_mov_b32 s{S_W2+1}, s75
        s_mov_b32 s{S_B2}, s76
        s_mov_b32 s{S_B2+1}, s77
        s_mov_b32 s{S_B1}, s72
        s_mov_b32 s{S_B1+1}, s73
        buffer_load_dword v106, v111, {sq(S_W2)}, 0 offen
        buffer_load_ushort v107, v112, {sq(S_B2)}, 0 offen
        buffer_load_dwordx2 v[104:105], v113, {sq(S_B1)}, 0 offen
        s_add_u32 s{S_HIST}, s66, s39
        s_addc_u32 s{S_HIST+1}, s67, 0""")
        ntouch = 0
        if not o.get('notouch'):
            a(f'buffer_load_dword v110, v110, {sq(S_HIST)}, 0 offen')
            ntouch = 1
        if self.prof:
            a('s_mov_b32 s61, s62')
            a(f's_mov_b32 s{S_STAMP + 7}, s54')
        a(f"""
        s_add_u32 s{S_OUT}, s78, s40
        s_addc_u32 s{S_OUT+1}, s79, 0
        s_movk_i32 s{S_OUT+2}, 512
        s_mov_b32 s{S_OUT+3}, 0x00020000""")
        W1B, W1C, W1A, W1D = 128, 144, 160, 176

        def w1load(base, row):
            a(f's_mov_b32 s46, {row * 256}')
            for i in range(4):
                a(f'buffer_load_dwordx4 {q(base + 4*i)}, v126, {sq(S_W1)}, s46 offen offset:{1024 * i}')
        SP, SN = 80, 86
        BLB, STB = 8, 9
        a(f"""
        v_lshlrev_b32 v126, 4, v0
        s_lshl_b32 s46, s{S_W}, 12
        v_add_u32 v126, s46, v126
        v_lshlrev_b32 v121, 2, v2
        v_xor_b32 v{V_Z}, v1, v121
        v_lshlrev_b32 v{V_Z}, 4, v{V_Z}
        v_lshrrev_b32 v114, 2, v1
        v_and_b32 v115, 3, v1
        v_and_b32 v76, 1, v114
        v_lshlrev_b32 v76, 4, v76
        v_mov_b32 v77, 0x3f80
        v_lshlrev_b32 v77, v76, v77
        v_cmp_eq_u32 vcc, v115, v2
        v_mov_b32 v{SP}, 0
        v_mov_b32 v{SP+1}, 0
        v_cndmask_b32 v77, 0, v77, vcc
        v_cmp_gt_u32 vcc, 2, v114
        v_mov_b32 v{SP+4}, 0
        v_mov_b32 v{SP+5}, 0
        v_cndmask_b32 v{SP+2}, 0, v77, vcc
        v_cndmask_b32 v{SP+3}, v77, 0, vcc
        v_mov_b32 v{SN}, 0
        v_mov_b32 v{SN+1}, 0
        v_lshlrev_b32 v76, 8, v{SP+2}
        v_and_b32 v76, 0x80008000, v76
        v_or_b32 v{SN+2}, v{SP+2}, v76
        v_lshlrev_b32 v76, 8, v{SP+3}
        v_and_b32 v76, 0x80008000, v76
        v_or_b32 v{SN+3}, v{SP+3}, v76
        v_mov_b32 v{SN+4}, 0
        v_mov_b32 v{SN+5}, 0""")
        a(f"""
        v_lshrrev_b32 v76, 1, v1
        v_and_b32 v77, 1, v1
        v_lshlrev_b32 v77, 7, v77
        v_lshl_add_u32 v77, v2, 4, v77
        s_lshr_b32 s46, s{S_W}, 1
        s_lshl_b32 s46, s46, 11
        s_and_b32 s47, s{S_W}, 1
        s_lshl_b32 s52, s47, 8
        s_add_u32 s52, s52, s46
        s_movk_i32 s53, {TS}
        v_mad_u32_u24 v{BLB}, v76, s53, v77
        v_add_u32 v{BLB}, s52, v{BLB}
        v_xor_b32 v78, v2, v114
        v_and_b32 v77, 1, v1
        v_lshlrev_b32 v77, 7, v77
        v_lshl_add_u32 v77, v78, 4, v77
        s_movk_i32 s53, {RINGW}
        v_mad_u32_u24 v{STB}, v76, s53, v77
        s_lshl_b32 s52, s{S_W}, 9
        s_add_u32 s52, s52, {RING + SLOT}
        v_add_u32 v{STB}, s52, v{STB}
        s_mov_b32 s100, 0xbfb8aa3b
        s_mov_b32 s101, 0xbfb8aa3b""")
        a(f"""
        s_mul_i32 s64, s{S_W}, {LISTW}
        s_add_u32 s64, s64, {LIST}
        v_lshlrev_b32 v120, 4, v0
        v_add_u32 v120, s64, v120
        v_mov_b32 v64, -1
        v_mov_b32 v65, -1
        v_mov_b32 v66, -1
        v_mov_b32 v67, -1
        ds_write_b128 v120, v[64:67]
        v_mov_b32 v68, 0
        v_mov_b32 v69, 0
        v_mov_b32 v70, 0
        v_mov_b32 v71, 0
        ds_write_b128 v120, v[68:71] offset:{IDXB}""")
        a(f"""
        v_lshlrev_b32 v{V_IA}, 1, v2
        v_add_u32 v{V_IA}, s64, v{V_IA}
        s_add_u32 s65, s64, {IDXB}
        v_lshlrev_b32 v{V_MA}, 3, v2
        v_add_u32 v{V_MA}, s65, v{V_MA}
        s_mul_i32 s46, s{S_W}, {2*CTS}
        s_add_u32 s46, s46, {CT}
        v_lshlrev_b32 v{V_CA}, 4, v2
        v_add_u32 v{V_CA}, s46, v{V_CA}""")
        a(f"""
        v_lshlrev_b32 v121, 10, v114
        v_lshl_add_u32 v121, v115, 8, v121
        v_lshrrev_b32 v122, 3, v1
        v_lshl_add_u32 v121, v122, 5, v121
        v_lshl_add_u32 v121, v2, 4, v121
        v_add_u32 v121, s{S_RING}, v121
        s_sub_u32 s46, {TT}, s{S_RING}""")
        for s in range(4):
            a(f"""
            v_xor_b32 v122, {s}, v115
            v_lshl_add_u32 v{V_BA+s}, v122, 6, v121
            v_add_u32 v{92+s}, s46, v{V_BA+s}""")
        a(f"""
        v_lshrrev_b32 v122, 1, v115
        v_lshl_add_u32 v122, v2, 1, v122
        v_lshlrev_b32 v123, 2, v114
        v_xor_b32 v122, v122, v123
        v_and_b32 v123, 1, v115
        v_lshlrev_b32 v123, 3, v123
        v_lshl_add_u32 v123, v114, 8, v123
        v_add_u32 v123, s{S_RING}, v123
        v_lshl_add_u32 v{V_TA}, v122, 4, v123
        v_xor_b32 v122, 8, v122
        v_lshl_add_u32 v{V_TA+1}, v122, 4, v123""")
        TVA = V_SBF
        a(f"""
        s_and_b32 s46, s{S_W}, 1
        s_lshl_b32 s46, s46, 7
        s_add_u32 s52, s45, s46
        s_sub_u32 s53, s45, s46
        v_lshlrev_b32 v122, 1, v115
        v_lshl_add_u32 v122, v114, 4, v122
        v_add_u32 v{TVA}, s52, v122
        v_add_u32 v{TVA+1}, s53, v122""")
        for k in range(8):
            a(f'v_add_u32 v{116+k}, {200 * (k // 4) + 64 * (k % 4)}, v0')
        a(f"""
        v_lshrrev_b32 v64, 1, v1
        v_and_b32 v65, 1, v2
        v_lshlrev_b32 v65, 2, v65
        v_sub_u32 v64, v64, v65
        v_and_b32 v65, 1, v1
        v_lshlrev_b32 v65, 4, v65
        v_mov_b32 v66, 0x0d0c
        v_lshlrev_b32 v66, v65, v66""")
        for i in range(4):
            a(f"""
            v_cmp_eq_u32 vcc, {i}, v64
            v_mov_b32 v68, 0x0c0c0c0c
            v_cndmask_b32 v67, 0, v66, vcc
            v_xor_b32 v{V_SEL+i}, v68, v67""")
        QA = [192 + 4 * k for k in range(8)]
        QB = [224 + 4 * k for k in range(8)]

        def sel(S, half):
            return q(S + 2 if half == 0 else S)

        def scale_cvt(quads):
            for k in range(8):
                r = quads[k]
                a(f'v_pk_mul_f32 {q(r,2)}, {q(r,2)}, s[100:101]')
                a(f'v_pk_mul_f32 {q(r+2,2)}, {q(r+2,2)}, s[100:101]')
            for k in range(8):
                r = quads[k]
                a(f'v_cvt_pk_bf16_f32 v{r}, v{r}, v{r+1}')
                a(f'v_cvt_pk_bf16_f32 v{r+1}, v{r+2}, v{r+3}')

        self.stamp(0)
        if self.prof:
            a(f's_mov_b32 s{S_STAMP + 11}, s58')
        nyoung = (nsmall - 8) + 4 + ntouch
        early = o.get('early', 0)
        if early:
            w1load(W1B, 128)
        a(f's_waitcnt vmcnt({nyoung + 4 * early})')
        self.stamp(1)
        if not early:
            w1load(W1B, 128)
        for k in range(8):
            a(f'v_cmp_neq_f32 {sq(S_BAL + 2*k, 2)}, 0, v{96+k}')
        for k in range(8):
            a(f"""
            v_mbcnt_lo_u32_b32 v{64+k}, s{S_BAL + 2*k}, 0
            v_mbcnt_hi_u32_b32 v{64+k}, s{S_BAL + 2*k + 1}, v{64+k}""")
        pi = [66, 67, 68, 69, 70, 71, 72, 73]
        a(f's_mov_b32 s{pi[0]}, s64')
        for k in range(8):
            a(f's_bcnt1_i32_b64 s46, {sq(S_BAL + 2*k, 2)}')
            if k in (3, 7):
                n = S_N0 if k == 3 else S_N1
                st = pi[0] if k == 3 else pi[4]
                a(f"""
                s_lshl1_add_u32 s47, s46, s{pi[k]}
                s_sub_u32 s47, s47, s{st}
                s_add_u32 s47, s47, 31
                s_lshr_b32 s{n}, s47, 5
                s_max_u32 s{n}, s{n}, 1""")
                if k == 3:
                    a(f"""
                    s_lshl_b32 s47, s{n}, 5
                    s_add_u32 s{pi[4]}, s47, s{pi[0]}""")
            else:
                a(f's_lshl1_add_u32 s{pi[k+1]}, s46, s{pi[k]}')
        w1load(W1C, 256)
        for k in range(8):
            a(f'v_lshl_add_u32 v{72+k}, v{64+k}, 1, s{pi[k]}')
        for k in range(8):
            a(f"""
            s_mov_b64 exec, {sq(S_BAL + 2*k, 2)}
            ds_write_b16 v{72+k}, v{116+k}
            ds_write_b16_d16_hi v{72+k}, v{96+k} offset:{IDXB}""")
        a('s_mov_b64 exec, -1')
        for j in range(4):
            a(f'ds_read_u16 v{V_IDX+j}, v{V_IA} offset:{8*j}')
        for j in range(4):
            a(f'ds_read_u16 v{44+j}, v{V_IA} offset:{32 + 8*j}')
        w1load(W1A, 0)
        a(f"""
        s_waitcnt vmcnt({12 + ntouch})
        v_lshlrev_b32 v76, 16, v106
        v_and_b32 v77, 0xffff0000, v106
        v_and_b32 v78, 0x7fffffff, v76
        v_and_b32 v79, 0x7fffffff, v77
        v_max_u32 v78, v78, v79
        v_lshlrev_b32 v107, 16, v107
        v_lshlrev_b32 v112, 16, v104
        v_max_u32_dpp v78, v78, v78 row_shr:1 row_mask:0xf bank_mask:0xf
        v_and_b32 v113, 0xffff0000, v104
        v_lshlrev_b32 v114, 16, v105
        v_max_u32_dpp v78, v78, v78 row_shr:2 row_mask:0xf bank_mask:0xf
        v_and_b32 v115, 0xffff0000, v105
        s_mov_b32 s{S_ONE16}, 0x3c003c00
        v_max_u32_dpp v78, v78, v78 row_shr:4 row_mask:0xf bank_mask:0xf
        v_pk_mul_f32 v[112:113], v[112:113], s[100:101]
        v_pk_mul_f32 v[114:115], v[114:115], s[100:101]
        v_max_u32_dpp v78, v78, v78 row_shr:8 row_mask:0xf bank_mask:0xf
        s_waitcnt lgkmcnt(0)""")
        for j in range(4):
            a(f'v_lshl_add_u32 v{V_IDX+j}, v{V_IDX+j}, 8, v{V_Z}')
        a(f"""
        v_readlane_b32 s46, v78, 15
        v_readlane_b32 s47, v78, 31
        v_readlane_b32 s72, v78, 47
        v_readlane_b32 s73, v78, 63
        s_max_u32 s46, s46, s47
        s_max_u32 s72, s72, s73
        s_max_u32 s46, s46, s72
        s_lshr_b32 s46, s46, 23
        s_max_u32 s46, s46, 81
        s_sub_u32 s47, 268, s46
        s_lshl_b32 s{S_SCALE}, s47, 23
        s_sub_u32 s47, s46, 14
        s_lshl_b32 s{S_INV}, s47, 23
        v_mul_f32 v76, s{S_SCALE}, v76
        v_mul_f32 v77, s{S_SCALE}, v77
        v_cvt_pk_f16_f32 v76, v76, v77
        v_add_u32 v79, {W2S}, v111
        ds_write_b32 v79, v76
        v_lshlrev_b32 v79, 3, v2
        v_add_u32 v79, {W2S}, v79
        v_mul_f32 v{V_B2S}, s{S_SCALE}, v107""")
        for qq in range(4):
            a(f'ds_read2_b64 {q(V_W2R + 4*qq)}, v79 offset0:{8*qq} offset1:{8*qq+4}')
        a(f"""
        v_mov_b32 v{V_B2S+1}, v{V_B2S}
        v_mov_b32 v{V_B2S+2}, v{V_B2S}
        v_mov_b32 v{V_B2S+3}, v{V_B2S}""")
        w1load(W1D, 384)
        self.stamp(2)
        for j in range(4):
            a(f"""
            s_add_u32 m0, s{S_RING}, {j*1024 + BETA[j]}
            buffer_load_dwordx4 v{V_IDX+j}, {sq(S_HIST)}, 0 offen nt lds""")
        a('s_waitcnt vmcnt(12)')
        for k in range(8):
            i, h = k >> 1, k & 1
            a(f'v_mfma_f32_16x16x32_bf16 {q(QA[k])}, {sel(SP,h)}, {q(W1B + 4*i)}, 0')
        for k in range(8):
            i, h = k >> 1, k & 1
            a(f'v_mfma_f32_16x16x32_bf16 {q(QA[k])}, {sel(SN,h)}, {q(W1C + 4*i)}, {q(QA[k])}')
        for k in range(8):
            i, h = k >> 1, k & 1
            a(f'v_mfma_f32_16x16x32_bf16 {q(QB[k])}, {sel(SP,h)}, {q(W1C + 4*i)}, 0')
        scale_cvt(QA)
        for k in range(8):
            i, h = k >> 1, k & 1
            a(f'ds_write_b64 v{STB}, {q(QA[k],2)} offset:{(i >> 1)*256 + (i & 1)*8 + h*64}')
        self.stamp(3)
        a('s_waitcnt vmcnt(8)')
        for k in range(8):
            i, h = k >> 1, k & 1
            a(f'v_mfma_f32_16x16x32_bf16 {q(QB[k])}, {sel(SP,h)}, {q(W1A + 4*i)}, {q(QB[k])}')
        a('s_waitcnt vmcnt(4)')
        for k in range(8):
            i, h = k >> 1, k & 1
            a(f'v_mfma_f32_16x16x32_bf16 {q(QA[k])}, {sel(SP,h)}, {q(W1D + 4*i)}, 0')
        scale_cvt(QB)
        for k in range(8):
            i, h = k >> 1, k & 1
            a(f'ds_write_b64 v{BLB}, {q(QB[k],2)} offset:{(i & 1)*1024 + (i >> 1)*8 + h*64 + 512}')
        scale_cvt(QA)
        for k in range(8):
            i, h = k >> 1, k & 1
            a(f'ds_write_b64 v{BLB}, {q(QA[k],2)} offset:{(i & 1)*1024 + (i >> 1)*8 + h*64}')
        a(f"""
        s_lshr_b32 s46, s{S_W}, 1
        v_xor_b32 v120, s46, v0
        v_lshlrev_b32 v120, 4, v120
        s_add_u32 s46, s{S_RING}, {SLOT}
        v_add_u32 v120, s46, v120
        s_lshl_b32 s46, s{S_W}, 6
        s_add_u32 s46, s46, {CT}
        v_mul_u32_u24 v121, {CTS}, v1
        v_lshl_add_u32 v121, v2, 4, v121
        v_add_u32 v121, s46, v121
        s_waitcnt lgkmcnt(0)""")
        self.stamp(4)
        a('s_barrier')
        TF, WF = 80, 128
        for s in range(4):
            a(f'ds_read_b128 {q(WF + 4*s)}, v120 offset:{s*1024}')
            a(f'ds_read_b128 {q(TF + 4*s)}, v{92 + s}')
        for bb in range(2):
            lo = V_D2 if bb == 0 else V_TV1
            hi = V_MSK if bb == 0 else V_ACC
            for s in range(4):
                x = s ^ bb
                r = TVA if x < 2 else TVA + 1
                a(f'ds_read_u16 v{lo+s}, v{r} offset:{256*bb + 64*x}')
                a(f'ds_read_u16 v{hi+s}, v{r} offset:{256*bb + 64*x + 8}')
        a(f"""
        s_mov_b32 s{S_BATCH}, 0
        s_mov_b32 s{S_LEFT}, s{S_N0}""")
        for j in range(4):
            a(f'v_lshl_add_u32 v{44+j}, v{44+j}, 8, v{V_Z}')
        a('s_waitcnt lgkmcnt(15)')
        for s in range(4):
            a(f'v_mfma_f32_16x16x32_bf16 {q(112)}, {q(WF + 4*s)}, {q(TF + 4*s)}, {q(112)}')
        a('s_waitcnt lgkmcnt(0)')
        for s in range(4):
            a(f'v_lshl_or_b32 v{V_D2+s}, v{V_MSK+s}, 16, v{V_D2+s}')
            a(f'v_lshl_or_b32 v{V_TV1+s}, v{V_ACC+s}, 16, v{V_TV1+s}')
        a(f"""
        ds_write_b128 v121, v[112:115]
        s_waitcnt lgkmcnt(0)
        s_barrier""")
        for j in range(4):
            a(f"""
            s_add_u32 m0, s{S_RING}, {SLOT + j*1024 + BETA[j]}
            buffer_load_dwordx4 v{44+j}, {sq(S_HIST)}, 0 offen nt lds""")
        self.stamp(5)
        if 'prio' in self.o:
            sw = self.o['prio']
            a(f'''
            s_setprio 1
            s_mov_b32 s{S_SWC}, 0x7fffffff
            s_cmp_ge_u32 s{S_W}, 4
            s_cbranch_scc1 L_PRIO_B
            s_setprio 2
            s_add_u32 s{S_SWC}, s{S_N0}, {sw - 1}''')
            a.label('L_PRIO_B')
        if self.o.get('dbg'):
            a('s_waitcnt vmcnt(0)')
            self.dbg_dump_lds()
            a('s_barrier')

    def build(self):
        a = self.a
        TV = V_D2
        AO = lambda s, P: V_TR + 8 * (s & 1) + 4 * P
        BW = lambda n, P: V_BOP + 8 * (n % 4) + 4 * P
        DB = [112, 120, V_ACC]
        LB = 1
        a(f'''
        v_lshlrev_b32 v{LB}, 4, v{V_LANE}
        s_mov_b32 vcc_lo, -1
        s_mov_b32 vcc_hi, 0''')
        a('v_mov_b32 v2, 0x3f803f80')
        for s in range(4):
            a(f'v_cndmask_b32 v{TV+s}, v2, v{TV+s}, vcc')

        def reads(n):
            s, T = n // 8, n % 8
            for P in range(2):
                a(f'ds_read_b128 {q(BW(n, P))}, v{LB} offset:{T*TS + s*2048 + P*1024}')

        def aops(s):
            for i in range(4):
                a(f'v_perm_b32 v{AO(s,0)+i}, v{TV+s}, v{TV+s}, v{V_SEL+i}')
            a(f'v_lshrrev_b32 v2, 16, v{TV+s}')
            for i in range(4):
                a(f'v_perm_b32 v{AO(s,1)+i}, v2, v2, v{V_SEL+i}')

        def cvts(n):
            s, T = n // 8, n % 8
            d = DB[n % 3]
            w = V_WE + 16 * T + 4 * s
            a(f'v_cvt_pk_bf16_f32 v{w}, v{d}, v{d+1}')
            a(f'v_cvt_pk_bf16_f32 v{w+1}, v{d+2}, v{d+3}')
            a(f'v_cvt_pk_bf16_f32 v{w+2}, v{d+4}, v{d+5}')
            a(f'v_cvt_pk_bf16_f32 v{w+3}, v{d+6}, v{d+7}')

        for n in range(3):
            reads(n)
        aops(0)
        for n in range(32):
            s, T = n // 8, n % 8
            if n + 3 < 32:
                reads(n + 3)
                a('s_waitcnt lgkmcnt(6)')
            else:
                a(f's_waitcnt lgkmcnt({2 * (31 - n)})')
            d = DB[n % 3]
            for P in range(2):
                a(f'v_mfma_f32_16x16x32_bf16 {q(d + 4*P)}, {q(AO(s,P))}, {q(BW(n,P))}, 0')
            if n >= 2:
                cvts(n - 2)
            if T == 3 and s < 3:
                aops(s + 1)
        cvts(30)
        cvts(31)
        for i in range(8):
            a(f'v_mov_b32 v{V_ACC+i}, 0')

    def x(self, qq, t=0):
        return V_X + 8 * qq + 4 * t

    def rd_bop(self, par):
        return [f'ds_read_b128 {q(V_BOP + 4*s)}, v{V_BA+s} offset:{SLOT*par}' for s in range(4)]

    def rd_c(self, qq):
        return [f'ds_read_b128 {q(self.x(qq,t))}, v{V_CA} offset:{128*qq + 64*t}' for t in range(2)]

    def rd_tr(self, par):
        out = []
        for qq in range(4):
            for dh in range(2):
                r = V_TR + 4 * qq + 2 * dh
                out.append(f'ds_read_b64_tr_b16 {q(r,2)}, v{V_TA+dh} offset:{SLOT*par + qq*1024 + BETA[qq]}')
        return out

    def gemm1(self, qq):
        out = []
        for s in range(4):
            for t in range(2):
                T = 2 * qq + t
                xr = q(self.x(qq, t))
                out.append(f'v_mfma_f32_16x16x32_bf16 {xr}, {q(V_WE + 16*T + 4*s)}, {q(V_BOP + 4*s)}, {xr}')
        return out

    def sigmoid(self, qq):
        x = self.x(qq)
        e = [f'v_exp_f32 v{x+i}, v{x+i}' for i in range(8)]
        c = [f'v_cvt_pk_f16_f32 v{x+i}, v{x+2*i}, v{x+2*i+1}' for i in range(4)]
        ad = [f'v_pk_add_f16 v{x+i}, v{x+i}, s{S_ONE16}' for i in range(4)]
        r0 = [f'v_rcp_f16_sdwa v{x+i}, v{x+i} dst_sel:WORD_0 dst_unused:UNUSED_PRESERVE src0_sel:WORD_0' for i in range(4)]
        r1 = [f'v_rcp_f16_sdwa v{x+i}, v{x+i} dst_sel:WORD_1 dst_unused:UNUSED_PRESERVE src0_sel:WORD_1' for i in range(4)]
        return e, c, ad, r0 + r1

    def reducer(self, qq):
        c = q(V_B2S) if qq == 0 else q(V_D2)
        return f'v_mfma_f32_16x16x32_f16 {q(V_D2)}, {q(self.x(qq))}, {q(V_W2R + 4*qq)}, {c}'

    def finalize(self):
        return [f'v_pk_mul_f32 {q(V_D2,2)}, {q(V_D2,2)}, {q(V_MSK,2)}',
                f'v_pk_mul_f32 {q(V_D2+2,2)}, {q(V_D2+2,2)}, {q(V_MSK+2,2)}',
                f'v_cvt_pk_bf16_f32 v{V_SBF}, v{V_D2}, v{V_D2+1}',
                f'v_cvt_pk_bf16_f32 v{V_SBF+1}, v{V_D2+2}, v{V_D2+3}']

    def gemv(self):
        out = []
        for qq in range(4):
            for dh in range(2):
                acc = q(V_ACC + 4 * dh)
                out.append(f'v_mfma_f32_4x4x4_16b_bf16 {acc}, {q(V_SBF,2)}, {q(V_TR + 4*qq + 2*dh, 2)}, {acc} cbsz:4 abid:{4*qq}')
        return out

    def phase(self, mf, sig, pre=(), mid=()):
        a = self.a
        e, c, ad, r = sig
        seq = [mf[0], e[0], e[1]] + list(pre) + [mf[1], e[2], e[3], mf[2], e[4], e[5], mf[3], e[6], e[7],
               mf[4], c[0], c[1], mf[5], c[2], c[3], mf[6]] + ad + [mf[7]] + list(mid) + r
        for s in seq:
            a(s)

    def tile(self, par, first, tag):
        a = self.a
        io = 32 * par
        if first:
            a('s_waitcnt vmcnt(4)')
            if par == 0:
                self.stamp_once(6)
            for s in [self.rd_c(0)[0]] + self.rd_bop(par)[:1] + [self.rd_c(0)[1]] + self.rd_bop(par)[1:] + self.rd_c(1) + self.rd_c(2):
                a(s)
        a('s_waitcnt lgkmcnt(4)')
        for s in self.gemm1(0):
            a(s)
        tr = self.rd_tr(par)
        idx = [f'ds_read_u16 v{V_IDX+j}, v{V_IA} offset:{io + 64 + 8*j}' for j in range(4)]
        if not first:
            for s in self.finalize():
                a(s)
            for s in idx[:2]:
                a(s)
            g = self.gemv()
            a(g[0]); a(g[1]); a(idx[2]); a(g[2]); a(g[3]); a(idx[3]); a(g[4]); a(g[5]); a(tr[0]); a(g[6]); a(g[7])
            for s in tr[1:]:
                a(s)
        else:
            for s in idx + tr:
                a(s)
        for s in self.rd_c(3):
            a(s)
        for i in range(4):
            a(f'ds_read_u16_d16_hi v{V_MSK+i}, v{V_MA} offset:{32*par + 2*i}')
        a('s_waitcnt lgkmcnt(15)')
        dma = []
        for j in range(4):
            dma += [f's_add_u32 m0, s{S_RING}, {SLOT*par + j*1024 + BETA[j]}',
                    f'v_lshl_add_u32 v{V_IDX+j}, v{V_IDX+j}, 8, v{V_Z}',
                    f'buffer_load_dwordx4 v{V_IDX+j}, {sq(S_HIST)}, 0 offen nt lds']
        self.phase(self.gemm1(1), self.sigmoid(0), mid=['s_waitcnt lgkmcnt(6)'] + dma)
        if par == 1:
            a(f'v_add_u32 v{V_IA}, 64, v{V_IA}')
        self.phase(self.gemm1(2), self.sigmoid(1), pre=[self.reducer(0)])
        a('s_waitcnt lgkmcnt(0)')
        if par == 1:
            a(f'v_add_u32 v{V_MA}, 64, v{V_MA}')
        self.phase(self.gemm1(3), self.sigmoid(2), pre=[self.reducer(1)])
        if 'prio' in self.o:
            a(f'''
            s_sub_u32 s{S_SWC}, s{S_SWC}, 1
            s_cbranch_scc0 L_PSW_{tag}
            s_setprio 0''')
            a.label(f'L_PSW_{tag}')
        a(f'''
        s_sub_u32 s{S_LEFT}, s{S_LEFT}, 1
        s_cmp_eq_u32 s{S_LEFT}, 0
        s_cbranch_scc1 L_DRAIN''')

    def s4(self, par):
        a = self.a
        e, c, ad, r = self.sigmoid(3)
        nb = self.rd_bop(par ^ 1)
        a(e[0]); a(e[1]); a(self.reducer(2))
        a('s_waitcnt vmcnt(4)')
        for s in [self.rd_c(0)[0], nb[0], self.rd_c(0)[1]] + nb[1:] + self.rd_c(1) + self.rd_c(2):
            a(s)
        for s in e[2:] + c + ad + r:
            a(s)
        a('s_nop 1')
        a(self.reducer(3))

    def stamp_once(self, k):
        pass

    def drain(self):
        a = self.a
        a.label('L_DRAIN')
        e, c, ad, r = self.sigmoid(3)
        a(e[0]); a(e[1]); a(self.reducer(2))
        for s in e[2:] + c + ad + r:
            a(s)
        a(self.reducer(3))
        for s in self.finalize():
            a(s)
        g = self.gemv()
        for s in g:
            a(s)
        a(f'''
        v_mul_f32 v1, s{S_INV}, v{V_ACC}
        v_mul_f32 v2, s{S_INV}, v{V_ACC+4}
        v_cvt_pk_bf16_f32 v1, v1, v2
        s_lshl_b32 s46, s{S_BATCH}, 8
        buffer_store_short v1, v{V_OUTA}, {sq(S_OUT)}, s46 offen
        buffer_store_short_d16_hi v1, v{V_OUTA}, {sq(S_OUT)}, s46 offen offset:128
        s_cmp_eq_u32 s{S_BATCH}, 1
        s_cbranch_scc1 L_FIN
        s_mov_b32 s{S_BATCH}, 1
        s_mov_b32 s{S_LEFT}, s{S_N1}
        v_add_u32 v{V_CA}, {CTS}, v{V_CA}''')
        for s in range(4):
            a(f'v_mov_b32 v{V_D2+s}, v{V_TV1+s}')
        self.stamp(8)
        a('s_branch L_BUILD')

    def finish(self):
        a = self.a
        a.label('L_FIN')
        if self.prof:
            self.stamp(10)
            a(f'''
            s_memrealtime s[46:47]
            s_waitcnt vmcnt(0) lgkmcnt(0)
            s_mov_b32 s60, s46
            s_lshl_b32 s46, s2, 3
            s_add_u32 s46, s46, s{S_W}
            s_lshl_b32 s46, s46, 6
            s_add_u32 s84, s82, s46
            s_addc_u32 s85, s83, 0
            s_movk_i32 s86, 64
            s_mov_b32 s87, 0x00020000
            v_mov_b32 v1, 0''')
            for k in range(16):
                a(f'v_writelane_b32 v1, s{S_STAMP + k}, {k}')
            a(f'''
            v_lshlrev_b32 v2, 2, v0
            buffer_store_dword v1, v2, s[84:87], 0 offen
            s_waitcnt vmcnt(0)''')
        a.label('L_END')
        a('s_endpgm')

    def gen(self):
        a = self.a
        self.prologue()
        a.label('L_BUILD')
        self.build()
        if self.prof:
            a(f'''
            s_memtime s[46:47]
            s_waitcnt lgkmcnt(0)
            s_cmp_eq_u32 s{S_BATCH}, 0
            s_cselect_b32 s{S_STAMP+6}, s46, s{S_STAMP+6}
            s_mov_b32 s{S_STAMP+9}, s46''')
        if self.o.get('dbg'):
            a('s_cmp_eq_u32 s41, 1')
            a('s_cbranch_scc1 L_DBG_B1')
            self.dbg_dump_regs(V_WE, 128, 0, 'we')
            a.label('L_DBG_B1')
        a(f'''
        s_and_b32 s46, s{S_N0}, s{S_BATCH}
        s_cmp_eq_u32 s46, 1
        s_cbranch_scc1 L_FIRST1''')
        a.label('L_FIRST0')
        self.tile(0, True, 'f0')
        self.s4(0)
        a('s_branch L_BODY1')
        a.label('L_FIRST1')
        self.tile(1, True, 'f1')
        self.s4(1)
        a.label('L_BODY0')
        self.tile(0, False, 'b0')
        self.s4(0)
        a.label('L_BODY1')
        self.tile(1, False, 'b1')
        self.s4(1)
        a('s_branch L_BODY0')
        self.drain()
        self.finish()
        nn = a.fix_hazards(verbose=self.o.get('verbose', False))
        return nn


HEADER = '''; DIN local activation unit (B=4096, L=200, D=H=128), gfx950.
; @launch grid=(256,1,1) block=(512,1,1) lds={lds}
.amdgcn_target "amdgcn-amd-amdhsa--gfx950"
.text
.globl {name}
.p2align 8
.type {name},@function
{name}:
'''
FOOTER = '''.section .rodata,"a"
.p2align 6
.amdhsa_kernel {name}
  .amdhsa_next_free_vgpr 256
  .amdhsa_next_free_sgpr 102
  .amdhsa_accum_offset 256
  .amdhsa_group_segment_fixed_size 0
  .amdhsa_kernarg_size 80
  .amdhsa_user_sgpr_count 2
  .amdhsa_user_sgpr_kernarg_segment_ptr 1
  .amdhsa_system_sgpr_workgroup_id_x 1
.end_amdhsa_kernel
'''


def main():
    ap = argparse.ArgumentParser()
    ap.add_argument('-o', default='standalone__sequential_behavior_din__recsys.s')
    ap.add_argument('--prof', action='store_true')
    ap.add_argument('-v', action='store_true')
    ap.add_argument('--opt', action='append', default=[])
    args = ap.parse_args()
    opts = {'verbose': args.v}
    for o in args.opt:
        k, _, v = o.partition('=')
        opts[k] = int(v) if v else 1
    g = Gen(prof=args.prof, opts=opts)
    nn = g.gen()
    txt = HEADER.format(lds=LDS_TOTAL, name=NAME) + g.a.text() + FOOTER.format(name=NAME)
    open(args.o, 'w').write(txt)
    n = sum(1 for t, _ in g.a.items if t == 'I')
    print(f'wrote {args.o}: {n} instrs, {nn} nop states inserted, LDS {LDS_TOTAL}')


if __name__ == '__main__':
    main()
```
